```python
import torch

def _softmax(x, axis=-1):
    return torch.softmax(x, dim=axis)
def _gelu(x):
    return torch.nn.functional.gelu(x, approximate="tanh")
def _silu(x):
    return torch.nn.functional.silu(x)
def _sigmoid(x):
    return torch.sigmoid(x)
def _layernorm(x, axis=-1, eps=1e-5):
    m = x.mean(dim=axis, keepdim=True)
    v = x.var(dim=axis, keepdim=True, unbiased=False)
    return (x - m) / torch.sqrt(v + eps)
def _scatter_add(tgt, idx, src, axis=0):
    return tgt.clone().index_add_(axis, idx, src)
def _segment_sum(src, seg, n):
    out = torch.zeros((n,) + src.shape[1:], dtype=src.dtype)
    return out.index_add_(0, seg, src)
def _pad(x, pw):
    flat = tuple(v for pair in reversed(pw) for v in pair)
    return torch.nn.functional.pad(x, flat)

kernel_name = 'standalone__gqa_block_cached__near_ridge'

def setup_inputs():

    _w = (lambda a: (lambda t: t.to(torch.bfloat16) if t.is_floating_point() else t)(torch.as_tensor(a)))
    B, Sq, D = 16, 48, 448
    Hq, Hkv, Sk, Dh = 16, 8, 48, 256
    assert Hq % Hkv == 0, (Hq, Hkv)
    return {
        "x": _w((lambda *s: torch.randn(*s, dtype=torch.bfloat16) * 0.8)(B, Sq, D)),
        "k_cache": _w((lambda *s: torch.randn(*s, dtype=torch.bfloat16) * 0.8)(B, Hkv, Sk, Dh)),
        "v_cache": _w((lambda *s: torch.randn(*s, dtype=torch.bfloat16) * 0.05)(B, Hkv, Sk, Dh)),
        "wq": _w((lambda *s: torch.randn(*s, dtype=torch.bfloat16) * 0.8)(D, Hq * Dh) * (D ** -0.5)),
        "wo": _w((lambda *s: torch.randn(*s, dtype=torch.bfloat16) * 0.05)(Hq * Dh, D) * ((Hq * Dh) ** -0.5)),
    }

def reference(x, k_cache, v_cache, wq, wo):
    B, Sq, D = x.shape
    Hq, Dh = 16, 256
    Hkv = k_cache.shape[1]
    rep = Hq // Hkv
    q = (lambda x, *d: x.permute(*d))((x @ wq).reshape(B, Sq, Hq, Dh), 0, 2, 1, 3)
    k = (lambda x, n, axis: torch.repeat_interleave(x, n, dim=axis))(k_cache, rep, axis=1)
    v = (lambda x, n, axis: torch.repeat_interleave(x, n, dim=axis))(v_cache, rep, axis=1)
    scores = torch.einsum("bhqd,bhkd->bhqk", q, k) * (Dh ** -0.5)
    p = _softmax(scores, axis=-1)
    o = torch.einsum("bhqk,bhkd->bhqd", p, v)
    return (lambda x, *d: x.permute(*d))(o, 0, 2, 1, 3).reshape(B, Sq, Hq * Dh) @ wo
```

```python
import sys

NAME = "standalone__gqa_block_cached__near_ridge"

HEADER = """; Kernarg layout for this problem (64 bytes, ptrs only, base s[0:1]):
"""


class Gen:
    def __init__(self):
        self.lines = []
        self.vm = []

    def e(self, s):
        self.lines.append("    " + s)

    def lab(self, s):
        self.lines.append(s + ":")

    def c(self, s):
        self.lines.append("    ; " + s)

    def vmem(self, s, tag):
        self.e(s)
        self.vm.append(tag)

    def wait_vm(self, tag):
        idx = max(i for i, t in enumerate(self.vm) if t == tag)
        n = len(self.vm) - 1 - idx
        assert n <= 63, n
        self.e(f"s_waitcnt vmcnt({n})")

    def text(self):
        return "\n".join(self.lines) + "\n"


def vr(a, n):
    return f"v[{a}:{a + n - 1}]"


XB = 0
SP = 0
PB = 36864
OB = 0
WB0 = 43008
WBS = 27648
RING = 6144
LDS_TOTAL = WB0 + 4 * WBS

R1 = 5
R2 = 3

PART_H = 768 * 448 * 4


def gen_k1(g, dbg=0):
    e = g.e
    sW, sB, sH = 46, 44, 45
    sXb, sWq, sKb, sVb, sWo, sOutB = 50, 51, 52, 53, 54, 55
    sRing, sVl = 56, 57
    sT, sT2, sT3 = 58, 59, 60
    sC = 61
    sKj1, sKj2 = 62, 63
    sO1, sO2 = 64, 65

    g.lab(f"k1_kernel")
    e("s_cmp_ge_u32 s2, 256")
    e("s_cbranch_scc1 K1_END")
    e("s_load_dwordx16 s[4:19], s[0:1], 0")
    e("v_and_b32 v1, 63, v0")
    e("v_lshrrev_b32 v28, 6, v0")
    e("v_and_b32 v2, 15, v1")
    e("v_lshrrev_b32 v3, 4, v1")
    e("v_readfirstlane_b32 s46, v28")
    e("s_and_b32 s47, s2, 7")
    e("s_lshr_b32 s48, s2, 3")
    e("s_and_b32 s49, s48, 1")
    e("s_lshl_b32 s45, s47, 1")
    e("s_add_u32 s45, s45, s49")
    e("s_lshr_b32 s44, s48, 1")
    e("v_mul_u32_u24 v4, 896, v2")
    e("v_lshl_add_u32 v4, v3, 4, v4")
    e("v_lshrrev_b32 v28, 3, v1")
    e("v_and_b32 v29, 7, v1")
    e("v_lshrrev_b32 v30, 1, v28")
    e("v_and_b32 v31, 1, v30")
    e("v_lshlrev_b32 v31, 1, v31")
    e("v_xor_b32 v31, v29, v31")
    e("v_lshlrev_b32 v5, 13, v28")
    e("v_lshl_add_u32 v5, v31, 4, v5")
    e("v_xor_b32 v31, 4, v31")
    e("v_lshlrev_b32 v6, 13, v28")
    e("v_lshl_add_u32 v6, v31, 4, v6")
    e("v_and_b32 v31, 3, v30")
    e("v_lshlrev_b32 v31, 1, v31")
    e("v_xor_b32 v31, v29, v31")
    e("v_lshlrev_b32 v7, 9, v28")
    e("v_lshl_add_u32 v7, v31, 4, v7")
    e("s_movk_i32 s58, 4682")
    for q in range(7):
        e(f"v_add_u32 v28, {64 * q}, v1")
        e("v_mul_u32_u24 v29, s58, v28")
        e("v_lshrrev_b32 v29, 16, v29")
        e("v_mul_u32_u24 v30, 14, v29")
        e("v_sub_u32 v30, v28, v30")
        e(f"v_mul_u32_u24 v{8 + q}, 896, v29")
        e(f"v_lshl_add_u32 v{8 + q}, v30, 4, v{8 + q}")
    e("v_lshlrev_b32 v15, 9, v2")
    e("v_lshl_add_u32 v15, v3, 3, v15")
    e("v_lshlrev_b32 v25, 4, v1")
    e("v_lshlrev_b32 v26, 3, v1")
    e("v_lshrrev_b32 v28, 2, v1")
    e("v_and_b32 v28, 3, v28")
    e("v_and_b32 v29, 3, v1")
    e("s_waitcnt lgkmcnt(0)")
    def srd(d, p, size):
        e(f"s_mov_b32 s{d}, s{p}")
        e(f"s_mov_b32 s{d + 1}, s{p + 1}")
        e(f"s_mov_b32 s{d + 2}, {size}")
        e(f"s_mov_b32 s{d + 3}, 0x00020000")
    srd(20, 4, 688128)
    srd(24, 6, 3145728)
    srd(28, 8, 3145728)
    srd(32, 10, 3670016)
    srd(36, 12, 3670016)
    srd(40, 18, 16 * PART_H)
    e(f"s_mul_i32 s{sXb}, s{sB}, 43008")
    e(f"s_lshl_b32 s{sT}, s{sW}, 7")
    e(f"s_lshl_b32 s{sWq}, s{sH}, 9")
    e(f"s_add_u32 s{sWq}, s{sWq}, s{sT}")
    e(f"s_lshr_b32 s{sT2}, s{sH}, 1")
    e(f"s_lshl_b32 s{sT3}, s{sB}, 3")
    e(f"s_add_u32 s{sT2}, s{sT2}, s{sT3}")
    e(f"s_mul_i32 s{sKb}, s{sT2}, 24576")
    e(f"s_add_u32 s{sKb}, s{sKb}, s{sT}")
    e(f"s_mov_b32 s{sVb}, s{sKb}")
    e(f"s_add_u32 s{sKj1}, s{sKb}, 8192")
    e(f"s_add_u32 s{sKj2}, s{sKb}, 16384")
    e(f"s_mul_i32 s{sWo}, s{sH}, {256 * 896}")
    e(f"s_mul_i32 s{sT}, s{sW}, 224")
    e(f"s_add_u32 s{sWo}, s{sWo}, s{sT}")
    e(f"s_mul_i32 s{sOutB}, s{sH}, {PART_H}")
    e(f"s_mul_i32 s{sT}, s{sB}, {48 * 1792}")
    e(f"s_add_u32 s{sOutB}, s{sOutB}, s{sT}")
    e(f"s_mul_i32 s{sT}, s{sW}, 448")
    e(f"s_add_u32 s{sOutB}, s{sOutB}, s{sT}")
    e(f"s_add_u32 s{sO1}, s{sOutB}, {16 * 1792}")
    e(f"s_add_u32 s{sO2}, s{sOutB}, {32 * 1792}")
    e(f"s_mul_i32 s{sVl}, s{sW}, {WBS}")
    e(f"s_add_u32 s{sVl}, s{sVl}, {WB0}")
    e(f"s_add_u32 s{sRing}, s{sVl}, {RING}")
    e(f"s_mov_b32 s{sC}, 0x3db8aa3b")
    xcount = 0
    for q in range(4):
        if q < 3:
            e(f"s_add_u32 s{sT}, s{sW}, {4 * q}")
        else:
            e(f"s_and_b32 s{sT}, s{sW}, 1")
            e(f"s_add_u32 s{sT}, s{sT}, 12")
        e(f"s_mul_i32 s{sT2}, s{sT}, 3072")
        e(f"s_lshl_b32 s{sT3}, s{sT}, 6")
        e(f"s_add_u32 s{sT3}, s{sT3}, s{sXb}")
        for mt in range(3):
            e(f"s_add_u32 m0, s{sT2}, {XB + mt * 1024}")
            if mt:
                e(f"s_add_u32 s{sT3}, s{sT3}, 14336")
            else:
                e("s_nop 0")
            g.vmem(f"buffer_load_dwordx4 v4, s[20:23], s{sT3} offen lds", "X")

    def wq_dma(ks):
        slot = ks % R1
        for i in range(4):
            e(f"s_add_u32 m0, s{sRing}, {slot * 4096 + i * 1024}")
            e(f"s_add_u32 s{sT}, s{sWq}, {(ks * 32 + 8 * i) * 8192}")
            g.vmem(f"buffer_load_dwordx4 v{5 + (i & 1)}, s[32:35], s{sT} offen lds", f"WQ{ks}")

    def wo_dma(S):
        slot = S % R2
        for q in range(7):
            e(f"s_add_u32 m0, s{sRing}, {slot * 7168 + q * 1024}")
            e(f"s_add_u32 s{sT}, s{sWo}, {S * 32 * 896}")
            g.vmem(f"buffer_load_dwordx4 v{8 + q}, s[36:39], s{sT} offen lds", f"WO{S}")

    for ks in range(R1):
        wq_dma(ks)
    for jt in range(3):
        sk = [sKb, sKj1, sKj2][jt]
        for s in range(2):
            for hf in range(2):
                r = 32 + (jt * 2 + s) * 4 + hf * 2
                g.vmem(f"buffer_load_dwordx2 {vr(r, 2)}, v15, s[24:27], s{sk} offen offset:{s * 64 + hf * 32}", "K")
    for q in range(6):
        e(f"s_add_u32 m0, s{sVl}, {q * 1024}")
        e(f"s_add_u32 s{sT}, s{sVb}, {q * 8 * 512}")
        g.vmem(f"buffer_load_dwordx4 v7, s[28:31], s{sT} offen lds", "V")
    e("v_lshrrev_b32 v30, 1, v28")
    e("v_and_b32 v31, 1, v3")
    e("v_lshl_or_b32 v31, v31, 1, v30")
    e("v_lshl_add_u32 v16, v3, 3, v28")
    e("v_lshlrev_b32 v16, 7, v16")
    e("v_lshl_add_u32 v16, v29, 3, v16")
    e(f"v_add_u32 v16, s{sRing}, v16")
    for t in range(3, -1, -1):
        e(f"v_xor_b32 v24, {t}, v31")
        e(f"v_lshl_add_u32 v{16 + t}, v24, 5, v16")
    e("v_lshl_add_u32 v31, v3, 1, v30")
    e("v_and_b32 v31, 3, v31")
    e("v_lshl_add_u32 v20, v3, 2, v28")
    e("v_mul_u32_u24 v24, 224, v20")
    e("v_lshlrev_b32 v20, 7, v20")
    e("v_lshl_add_u32 v20, v29, 3, v20")
    e(f"v_add_u32 v20, s{sVl}, v20")
    for t in range(3, -1, -1):
        e(f"v_xor_b32 v27, {t}, v31")
        e(f"v_lshl_add_u32 v{20 + t}, v27, 5, v20")
    e("v_lshl_add_u32 v24, v29, 3, v24")
    e(f"v_add_u32 v24, s{sRing}, v24")
    e("v_mul_u32_u24 v27, 1792, v2")
    e("v_lshl_add_u32 v27, v3, 4, v27")

    g.wait_vm("X")
    e("s_barrier")

    ACC = 64
    AF = [112, 128]
    BF = [144, 156]

    def p1_reads(ks):
        st = ks & 1
        slot = ks % R1
        L = []
        for t in range(4):
            for hf in range(2):
                L.append(f"ds_read_b64_tr_b16 {vr(AF[st] + t * 4 + hf * 2, 2)}, v{16 + t} offset:{slot * 4096 + hf * 512}")
        for mt in range(3):
            L.append(f"ds_read_b128 {vr(BF[st] + mt * 4, 4)}, v25 offset:{XB + (ks * 3 + mt) * 1024}")
        return L

    def interleave(mf, rd, lead=0):
        k = 0
        for idx, m in enumerate(mf):
            if k < len(rd):
                e(rd[k]); k += 1
            e(m)
        while k < len(rd):
            e(rd[k]); k += 1

    g.wait_vm("WQ0")
    for x in p1_reads(0):
        e(x)
    for ks in range(14):
        st = ks & 1
        rd = []
        if ks + 1 < 14:
            g.wait_vm(f"WQ{ks + 1}")
            rd = p1_reads(ks + 1)
        e("s_waitcnt lgkmcnt(0)")
        mf = []
        for t in range(4):
            for mt in range(3):
                a = ACC + (t * 3 + mt) * 4
                cc = "0" if ks == 0 else vr(a, 4)
                mf.append(f"v_mfma_f32_16x16x32_bf16 {vr(a, 4)}, {vr(AF[st] + t * 4, 4)}, {vr(BF[st] + mt * 4, 4)}, {cc}")
        interleave(mf, rd)
        if ks + R1 < 14:
            wq_dma(ks + R1)
        elif ks == 11:
            wo_dma(0)
        elif ks == 13:
            wo_dma(1)
            wo_dma(2)
    QF = 168
    e("s_nop 7")
    e("s_nop 1")
    for s in range(2):
        for mt in range(3):
            for hf in range(2):
                a = ACC + ((2 * s + hf) * 3 + mt) * 4
                d = QF + (s * 3 + mt) * 4 + hf * 2
                e(f"v_cvt_pk_bf16_f32 v{d}, v{a}, v{a + 1}")
                e(f"v_cvt_pk_bf16_f32 v{d + 1}, v{a + 2}, v{a + 3}")
    if dbg == 1:
        pass
    SA = 192
    g.wait_vm("K")
    e("s_nop 1")
    for s in range(2):
        for jt in range(3):
            for mt in range(3):
                a = SA + (jt * 3 + mt) * 4
                cc = "0" if s == 0 else vr(a, 4)
                e(f"v_mfma_f32_16x16x32_bf16 {vr(a, 4)}, {vr(32 + (jt * 2 + s) * 4, 4)}, {vr(QF + (s * 3 + mt) * 4, 4)}, {cc}")
    e("s_barrier")
    e(f"s_mul_i32 s{sT}, s{sW}, 9216")
    e(f"v_add_u32 v28, s{sT}, v25")
    e("s_nop 7")
    for tl in range(9):
        e(f"ds_write_b128 v28, {vr(SA + tl * 4, 4)} offset:{SP + tl * 1024}")
    e("s_waitcnt lgkmcnt(0)")
    e("s_barrier")
    e(f"s_cmp_ge_u32 s{sW}, 3")
    e("s_cbranch_scc1 K1_SMX_DONE")
    e(f"s_lshl_b32 s{sT}, s{sW}, 10")
    e(f"v_add_u32 v28, s{sT}, v25")
    T = 64
    for jt in range(3):
        for w2 in range(4):
            e(f"ds_read_b128 {vr(T + (jt * 4 + w2) * 4, 4)}, v28 offset:{SP + w2 * 9216 + jt * 3 * 1024}")
    e("s_waitcnt lgkmcnt(0)")
    for jt in range(3):
        b0 = T + jt * 16
        for r in range(4):
            e(f"v_add_f32 v{b0 + r}, v{b0 + r}, v{b0 + 4 + r}")
            e(f"v_add_f32 v{b0 + 8 + r}, v{b0 + 8 + r}, v{b0 + 12 + r}")
        for r in range(4):
            e(f"v_add_f32 v{b0 + r}, v{b0 + r}, v{b0 + 8 + r}")
    sv = [T + jt * 16 + r for jt in range(3) for r in range(4)]
    e(f"v_max3_f32 v112, v{sv[0]}, v{sv[1]}, v{sv[2]}")
    for k in range(3, 11, 2):
        e(f"v_max3_f32 v112, v112, v{sv[k]}, v{sv[k + 1]}")
    e(f"v_max_f32 v112, v112, v{sv[11]}")

    def xlane(op, reg, tmp):
        for sw in ("v_permlane16_swap_b32", "v_permlane32_swap_b32"):
            e(f"v_mov_b32 v{tmp}, v{reg}")
            e("s_nop 1")
            e(f"{sw} v{reg}, v{tmp}")
            e("s_nop 1")
            e(f"{op} v{reg}, v{reg}, v{tmp}")

    xlane("v_max_f32", 112, 113)
    e(f"v_mul_f32 v112, s{sC}, v112")
    for k in range(12):
        e(f"v_fma_f32 v{sv[k]}, v{sv[k]}, s{sC}, -v112")
    for k in range(12):
        e(f"v_exp_f32 v{sv[k]}, v{sv[k]}")
    e("s_nop 0")
    e(f"v_add_f32 v114, v{sv[0]}, v{sv[1]}")
    for k in range(2, 12):
        e(f"v_add_f32 v114, v114, v{sv[k]}")
    xlane("v_add_f32", 114, 113)
    e("v_rcp_f32 v114, v114")
    e("s_nop 0")
    for k in range(12):
        e(f"v_mul_f32 v{sv[k]}, v{sv[k]}, v114")
    for jt in range(3):
        b0 = T + jt * 16
        e(f"v_cvt_pk_bf16_f32 v{116 + jt * 2}, v{b0}, v{b0 + 1}")
        e(f"v_cvt_pk_bf16_f32 v{117 + jt * 2}, v{b0 + 2}, v{b0 + 3}")
    e(f"s_mul_i32 s{sT}, s{sW}, 1536")
    e(f"v_add_u32 v28, s{sT}, v26")
    for jt in range(3):
        e(f"ds_write_b64 v28, {vr(116 + jt * 2, 2)} offset:{PB + jt * 512}")
    e("s_waitcnt lgkmcnt(0)")
    g.lab("K1_SMX_DONE")
    e("s_barrier")
    PF = 168
    for mt in range(3):
        for jt in range(3):
            e(f"ds_read_b64 {vr(PF + mt * 8 + jt * 2, 2)}, v26 offset:{PB + (mt * 3 + jt) * 512}")
        e(f"v_mov_b32 v{PF + mt * 8 + 6}, 0")
        e(f"v_mov_b32 v{PF + mt * 8 + 7}, 0")
    VF = 112
    g.wait_vm("V")
    for dt in range(4):
        for jt in range(3):
            e(f"ds_read_b64_tr_b16 {vr(VF + dt * 8 + jt * 2, 2)}, v{20 + dt} offset:{jt * 2048}")
        e(f"v_mov_b32 v{VF + dt * 8 + 6}, 0")
        e(f"v_mov_b32 v{VF + dt * 8 + 7}, 0")
    e("s_waitcnt lgkmcnt(0)")
    for s in range(2):
        for dt in range(4):
            for mt in range(3):
                a = ACC + (dt * 3 + mt) * 4
                cc = "0" if s == 0 else vr(a, 4)
                e(f"v_mfma_f32_16x16x32_bf16 {vr(a, 4)}, {vr(VF + dt * 8 + s * 4, 4)}, {vr(PF + mt * 8 + s * 4, 4)}, {cc}")
    OF = 192
    e("s_nop 7")
    e("s_nop 1")
    for s in range(2):
        for mt in range(3):
            for hf in range(2):
                a = ACC + ((2 * s + hf) * 3 + mt) * 4
                d = OF + (s * 3 + mt) * 4 + hf * 2
                e(f"v_cvt_pk_bf16_f32 v{d}, v{a}, v{a + 1}")
                e(f"v_cvt_pk_bf16_f32 v{d + 1}, v{a + 2}, v{a + 3}")
    e(f"s_mul_i32 s{sT}, s{sW}, 6144")
    e(f"v_add_u32 v28, s{sT}, v25")
    for s in range(2):
        for mt in range(3):
            e(f"ds_write_b128 v28, {vr(OF + (s * 3 + mt) * 4, 4)} offset:{OB + (s * 3 + mt) * 1024}")
    e("s_waitcnt lgkmcnt(0)")
    e("s_barrier")
    A4 = 64
    AF4 = [148, 176]
    BF4 = [204, 216]

    def p4_reads(S):
        st = S & 1
        slot = S % R2
        L = []
        for nt in range(7):
            for hf in range(2):
                L.append(f"ds_read_b64_tr_b16 {vr(AF4[st] + nt * 4 + hf * 2, 2)}, v24 offset:{slot * 7168 + hf * 3584 + nt * 32}")
        for mt in range(3):
            L.append(f"ds_read_b128 {vr(BF4[st] + mt * 4, 4)}, v25 offset:{OB + (S * 3 + mt) * 1024}")
        return L

    g.wait_vm("WO0")
    for x in p4_reads(0):
        e(x)
    for S in range(8):
        st = S & 1
        rd = []
        if S + 1 < 8:
            g.wait_vm(f"WO{S + 1}")
            rd = p4_reads(S + 1)
        e("s_waitcnt lgkmcnt(0)")
        mf = []
        for nt in range(7):
            for mt in range(3):
                a = A4 + (nt * 3 + mt) * 4
                cc = "0" if S == 0 else vr(a, 4)
                mf.append(f"v_mfma_f32_16x16x32_bf16 {vr(a, 4)}, {vr(AF4[st] + nt * 4, 4)}, {vr(BF4[st] + mt * 4, 4)}, {cc}")
        interleave(mf, rd)
        if S + R2 < 8:
            wo_dma(S + R2)
    e("s_nop 7")
    e("s_nop 1")
    for mt in range(3):
        so = [sOutB, sO1, sO2][mt]
        for nt in range(7):
            a = A4 + (nt * 3 + mt) * 4
            g.vmem(f"buffer_store_dwordx4 {vr(a, 4)}, v27, s[40:43], s{so} offen offset:{nt * 64}", "ST")
    e("s_waitcnt vmcnt(0)")
    g.lab("K1_END")
    e("s_endpgm")


def gen_k2(g):
    e = g.e
    g.lab("k2_kernel")
    e("s_cmp_ge_u32 s2, 336")
    e("s_cbranch_scc1 K2_END")
    e("s_load_dwordx2 s[4:5], s[0:1], 40")
    e("s_load_dwordx2 s[6:7], s[0:1], 56")
    e("s_lshl_b32 s3, s2, 8")
    e("v_add_u32 v1, s3, v0")
    e("v_lshlrev_b32 v2, 4, v1")
    e("v_lshlrev_b32 v3, 3, v1")
    e("s_waitcnt lgkmcnt(0)")
    e("s_mov_b32 s8, s4")
    e("s_mov_b32 s9, s5")
    e("s_mov_b32 s10, 688128")
    e("s_mov_b32 s11, 0x00020000")
    e("s_mov_b32 s12, s6")
    e("s_mov_b32 s13, s7")
    e(f"s_mov_b32 s14, {16 * PART_H}")
    e("s_mov_b32 s15, 0x00020000")
    for h in range(16):
        e(f"s_mov_b32 s16, {h * PART_H}")
        e(f"buffer_load_dwordx4 {vr(8 + h * 4, 4)}, v2, s[12:15], s16 offen")
    for step in (1, 2, 4, 8):
        n = 16 // (2 * step)
        e(f"s_waitcnt vmcnt(0)") if step == 1 else None
        for k in range(0, 16, 2 * step):
            for r in range(4):
                e(f"v_add_f32 v{8 + k * 4 + r}, v{8 + k * 4 + r}, v{8 + (k + step) * 4 + r}")
    e("v_cvt_pk_bf16_f32 v4, v8, v9")
    e("v_cvt_pk_bf16_f32 v5, v10, v11")
    e("buffer_store_dwordx2 v[4:5], v3, s[8:11], 0 offen")
    e("s_waitcnt vmcnt(0)")
    g.lab("K2_END")
    e("s_endpgm")


def kd(name, vgpr, sgpr):
    return f""".amdhsa_kernel {name}
  .amdhsa_next_free_vgpr {vgpr}
  .amdhsa_next_free_sgpr {sgpr}
  .amdhsa_accum_offset {(vgpr + 3) // 4 * 4}
  .amdhsa_group_segment_fixed_size 0
  .amdhsa_kernarg_size 64
  .amdhsa_user_sgpr_count 2
  .amdhsa_user_sgpr_kernarg_segment_ptr 1
  .amdhsa_system_sgpr_workgroup_id_x 1
.end_amdhsa_kernel
"""


def main():
    out = HEADER
    out += f"; @launch kernel=k1_kernel grid=(256,1,1) block=(256,1,1) lds={LDS_TOTAL}\n"
    out += "; @launch kernel=k2_kernel grid=(336,1,1) block=(256,1,1) lds=0\n"
    out += '.amdgcn_target "amdgcn-amd-amdhsa--gfx950"\n.text\n'
    g = Gen()
    gen_k1(g)
    out += ".globl k1_kernel\n.p2align 8\n.type k1_kernel,@function\n" + g.text()
    g = Gen()
    gen_k2(g)
    out += ".globl k2_kernel\n.p2align 8\n.type k2_kernel,@function\n" + g.text()
    out += '.section .rodata,"a"\n.p2align 6\n'
    out += kd("k1_kernel", 256, 96)
    out += ".p2align 6\n"
    out += kd("k2_kernel", 80, 32)
    open(f"cdna_kernels/{NAME}.s", "w").write(out)


main()
```

```python
import sys

NAME = "standalone__gqa_block_cached__near_ridge"
STAMP_ORDER = [0,1,2,3,4,5,6,9,10,11,7,8]
STAMPS = len(sys.argv) > 1 and sys.argv[1] == "stamps"

HEADER = """; Kernarg layout for this problem (64 bytes, ptrs only, base s[0:1]):
"""


class Gen:
    def __init__(self):
        self.lines = []
        self.vm = []

    def e(self, s):
        self.lines.append("    " + s)

    def lab(self, s):
        self.lines.append(s + ":")

    def c(self, s):
        self.lines.append("    ; " + s)

    def vmem(self, s, tag):
        self.e(s)
        self.vm.append(tag)

    def wait_vm(self, tag):
        idx = max(i for i, t in enumerate(self.vm) if t == tag)
        n = len(self.vm) - 1 - idx
        assert n <= 63, n
        self.e(f"s_waitcnt vmcnt({n})")

    def stamp(self, idx):
        if not STAMPS: return
        self.e(f"s_memtime s[{72 + 2 * idx}:{73 + 2 * idx}]")

    def text(self):
        return "\n".join(self.lines) + "\n"


def vr(a, n):
    return f"v[{a}:{a + n - 1}]"


XB = 0
SP = 0
PB = 36864
OB = 0
WB0 = 43008
WBS = 27648
RING = 6144
LDS_TOTAL = WB0 + 4 * WBS

R1 = 5
R2 = 3

PART_H = 768 * 448 * 4


def gen_k1(g, dbg=0):
    e = g.e
    sW, sB, sH = 46, 44, 45
    sXb, sWq, sKb, sVb, sWo, sOutB = 50, 51, 52, 53, 54, 55
    sRing, sVl = 56, 57
    sT, sT2, sT3 = 58, 59, 60
    sC = 61
    sKj1, sKj2 = 62, 63
    sO1, sO2 = 64, 65

    g.lab(f"k1_kernel")
    e("s_cmp_ge_u32 s2, 256")
    e("s_cbranch_scc1 K1_END")
    e("s_load_dwordx16 s[4:19], s[0:1], 0")
    g.stamp(0)
    e("v_and_b32 v1, 63, v0")
    e("v_lshrrev_b32 v28, 6, v0")
    e("v_and_b32 v2, 15, v1")
    e("v_lshrrev_b32 v3, 4, v1")
    e("v_readfirstlane_b32 s46, v28")
    e("s_and_b32 s47, s2, 7")
    e("s_lshr_b32 s48, s2, 3")
    e("s_and_b32 s49, s48, 1")
    e("s_lshl_b32 s45, s47, 1")
    e("s_add_u32 s45, s45, s49")
    e("s_lshr_b32 s44, s48, 1")
    e("v_mul_u32_u24 v4, 896, v2")
    e("v_lshl_add_u32 v4, v3, 4, v4")
    e("v_lshrrev_b32 v28, 3, v1")
    e("v_and_b32 v29, 7, v1")
    e("v_lshrrev_b32 v30, 1, v28")
    e("v_and_b32 v31, 1, v30")
    e("v_lshlrev_b32 v31, 1, v31")
    e("v_xor_b32 v31, v29, v31")
    e("v_lshlrev_b32 v5, 13, v28")
    e("v_lshl_add_u32 v5, v31, 4, v5")
    e("v_xor_b32 v31, 4, v31")
    e("v_lshlrev_b32 v6, 13, v28")
    e("v_lshl_add_u32 v6, v31, 4, v6")
    e("v_and_b32 v31, 3, v30")
    e("v_lshlrev_b32 v31, 1, v31")
    e("v_xor_b32 v31, v29, v31")
    e("v_lshlrev_b32 v7, 9, v28")
    e("v_lshl_add_u32 v7, v31, 4, v7")
    e("s_movk_i32 s58, 4682")
    for q in range(7):
        e(f"v_add_u32 v28, {64 * q}, v1")
        e("v_mul_u32_u24 v29, s58, v28")
        e("v_lshrrev_b32 v29, 16, v29")
        e("v_mul_u32_u24 v30, 14, v29")
        e("v_sub_u32 v30, v28, v30")
        e(f"v_mul_u32_u24 v{8 + q}, 896, v29")
        e(f"v_lshl_add_u32 v{8 + q}, v30, 4, v{8 + q}")
    e("v_lshlrev_b32 v15, 9, v2")
    e("v_lshl_add_u32 v15, v3, 3, v15")
    e("v_lshlrev_b32 v25, 4, v1")
    e("v_lshlrev_b32 v26, 3, v1")
    e("v_lshrrev_b32 v28, 2, v1")
    e("v_and_b32 v28, 3, v28")
    e("v_and_b32 v29, 3, v1")
    e("s_waitcnt lgkmcnt(0)")
    def srd(d, p, size):
        e(f"s_mov_b32 s{d}, s{p}")
        e(f"s_mov_b32 s{d + 1}, s{p + 1}")
        e(f"s_mov_b32 s{d + 2}, {size}")
        e(f"s_mov_b32 s{d + 3}, 0x00020000")
    srd(20, 4, 688128)
    srd(24, 6, 3145728)
    srd(28, 8, 3145728)
    srd(32, 10, 3670016)
    srd(36, 12, 3670016)
    srd(40, 18, 768 * 16 * 896)
    srd(96, 14, 688128)
    e(f"s_mul_i32 s{sXb}, s{sB}, 43008")
    e(f"s_lshl_b32 s{sT}, s{sW}, 7")
    e(f"s_lshl_b32 s{sWq}, s{sH}, 9")
    e(f"s_add_u32 s{sWq}, s{sWq}, s{sT}")
    e(f"s_lshr_b32 s{sT2}, s{sH}, 1")
    e(f"s_lshl_b32 s{sT3}, s{sB}, 3")
    e(f"s_add_u32 s{sT2}, s{sT2}, s{sT3}")
    e(f"s_mul_i32 s{sKb}, s{sT2}, 24576")
    e(f"s_add_u32 s{sKb}, s{sKb}, s{sT}")
    e(f"s_mov_b32 s{sVb}, s{sKb}")
    e(f"s_add_u32 s{sKj1}, s{sKb}, 8192")
    e(f"s_add_u32 s{sKj2}, s{sKb}, 16384")
    e(f"s_mul_i32 s{sWo}, s{sH}, {256 * 896}")
    e(f"s_mul_i32 s{sT}, s{sW}, 224")
    e(f"s_add_u32 s{sWo}, s{sWo}, s{sT}")
    e(f"s_mul_i32 s{sOutB}, s{sH}, {PART_H}")
    e(f"s_mul_i32 s{sT}, s{sB}, {48 * 1792}")
    e(f"s_add_u32 s{sOutB}, s{sOutB}, s{sT}")
    e(f"s_mul_i32 s{sT}, s{sW}, 448")
    e(f"s_add_u32 s{sOutB}, s{sOutB}, s{sT}")
    e(f"s_add_u32 s{sO1}, s{sOutB}, {16 * 1792}")
    e(f"s_add_u32 s{sO2}, s{sOutB}, {32 * 1792}")
    e(f"s_mul_i32 s{sVl}, s{sW}, {WBS}")
    e(f"s_add_u32 s{sVl}, s{sVl}, {WB0}")
    e(f"s_add_u32 s{sRing}, s{sVl}, {RING}")
    e(f"s_mov_b32 s{sC}, 0x3db8aa3b")
    xcount = 0
    for q in range(4):
        if q < 3:
            e(f"s_add_u32 s{sT}, s{sW}, {4 * q}")
        else:
            e(f"s_and_b32 s{sT}, s{sW}, 1")
            e(f"s_add_u32 s{sT}, s{sT}, 12")
        e(f"s_mul_i32 s{sT2}, s{sT}, 3072")
        e(f"s_lshl_b32 s{sT3}, s{sT}, 6")
        e(f"s_add_u32 s{sT3}, s{sT3}, s{sXb}")
        for mt in range(3):
            e(f"s_add_u32 m0, s{sT2}, {XB + mt * 1024}")
            if mt:
                e(f"s_add_u32 s{sT3}, s{sT3}, 14336")
            else:
                e("s_nop 0")
            g.vmem(f"buffer_load_dwordx4 v4, s[20:23], s{sT3} offen lds", "X")

    def wq_dma(ks):
        slot = ks % R1
        for i in range(4):
            e(f"s_add_u32 m0, s{sRing}, {slot * 4096 + i * 1024}")
            e(f"s_add_u32 s{sT}, s{sWq}, {(ks * 32 + 8 * i) * 8192}")
            g.vmem(f"buffer_load_dwordx4 v{5 + (i & 1)}, s[32:35], s{sT} offen lds", f"WQ{ks}")

    def wo_dma(S):
        slot = S % R2
        for q in range(7):
            e(f"s_add_u32 m0, s{sRing}, {slot * 7168 + q * 1024}")
            e(f"s_add_u32 s{sT}, s{sWo}, {S * 32 * 896}")
            g.vmem(f"buffer_load_dwordx4 v{8 + q}, s[36:39], s{sT} offen lds", f"WO{S}")

    for ks in range(R1):
        wq_dma(ks)
    e("v_lshrrev_b32 v28, 5, v1")
    e("v_and_b32 v29, 31, v1")
    e("v_lshlrev_b32 v28, 13, v28")
    e("v_lshl_add_u32 v28, v29, 4, v28")
    e(f"s_mul_i32 s{sT}, s{sB}, {28 * 8192}")
    e(f"s_mul_i32 s{sT2}, s{sW}, {7 * 8192}")
    e(f"s_add_u32 s{sT}, s{sT}, s{sT2}")
    e(f"s_lshl_b32 s{sT2}, s{sH}, 9")
    e(f"s_add_u32 s{sT}, s{sT}, s{sT2}")
    for q in range(4):
        if q:
            e(f"s_add_u32 s{sT}, s{sT}, 16384")
        g.vmem(f"buffer_load_dwordx4 v[232:235], v28, s[32:35], s{sT} offen", "PF")
    e(f"s_mul_i32 s{sT}, s{sH}, {256 * 896}")
    e(f"s_mul_i32 s{sT2}, s{sB}, 14336")
    e(f"s_add_u32 s{sT}, s{sT}, s{sT2}")
    e(f"s_mul_i32 s{sT2}, s{sW}, 3584")
    e(f"s_add_u32 s{sT}, s{sT}, s{sT2}")
    for q in range(4):
        g.vmem(f"buffer_load_dwordx4 v[232:235], v25, s[36:39], s{sT} offen offset:{q * 1024}", "PF")
    e("v_lshrrev_b32 v28, 2, v1")
    e("v_and_b32 v28, 3, v28")
    e("v_and_b32 v29, 3, v1")
    for jt in range(3):
        sk = [sKb, sKj1, sKj2][jt]
        for s in range(2):
            for hf in range(2):
                r = 32 + (jt * 2 + s) * 4 + hf * 2
                g.vmem(f"buffer_load_dwordx2 {vr(r, 2)}, v15, s[24:27], s{sk} offen offset:{s * 64 + hf * 32}", "K")
    for q in range(6):
        e(f"s_add_u32 m0, s{sVl}, {q * 1024}")
        e(f"s_add_u32 s{sT}, s{sVb}, {q * 8 * 512}")
        g.vmem(f"buffer_load_dwordx4 v7, s[28:31], s{sT} offen lds", "V")
    e("v_lshrrev_b32 v30, 1, v28")
    e("v_and_b32 v31, 1, v3")
    e("v_lshl_or_b32 v31, v31, 1, v30")
    e("v_lshl_add_u32 v16, v3, 3, v28")
    e("v_lshlrev_b32 v16, 7, v16")
    e("v_lshl_add_u32 v16, v29, 3, v16")
    e(f"v_add_u32 v16, s{sRing}, v16")
    for t in range(3, -1, -1):
        e(f"v_xor_b32 v24, {t}, v31")
        e(f"v_lshl_add_u32 v{16 + t}, v24, 5, v16")
    e("v_lshl_add_u32 v31, v3, 1, v30")
    e("v_and_b32 v31, 3, v31")
    e("v_lshl_add_u32 v20, v3, 2, v28")
    e("v_mul_u32_u24 v24, 224, v20")
    e("v_lshlrev_b32 v20, 7, v20")
    e("v_lshl_add_u32 v20, v29, 3, v20")
    e(f"v_add_u32 v20, s{sVl}, v20")
    for t in range(3, -1, -1):
        e(f"v_xor_b32 v27, {t}, v31")
        e(f"v_lshl_add_u32 v{20 + t}, v27, 5, v20")
    e("v_lshl_add_u32 v24, v29, 3, v24")
    e(f"v_add_u32 v24, s{sRing}, v24")
    e("v_mul_u32_u24 v27, 1792, v2")
    e("v_lshl_add_u32 v27, v3, 4, v27")

    g.stamp(1)
    g.wait_vm("X")
    e("s_barrier")
    g.stamp(2)

    ACC = 64
    AF = [112, 128]
    BF = [144, 156]

    def p1_reads(ks):
        st = ks & 1
        slot = ks % R1
        L = []
        for t in range(4):
            for hf in range(2):
                L.append(f"ds_read_b64_tr_b16 {vr(AF[st] + t * 4 + hf * 2, 2)}, v{16 + t} offset:{slot * 4096 + hf * 512}")
        for mt in range(3):
            L.append(f"ds_read_b128 {vr(BF[st] + mt * 4, 4)}, v25 offset:{XB + (ks * 3 + mt) * 1024}")
        return L

    def interleave(mf, rd, lead=0):
        k = 0
        for idx, m in enumerate(mf):
            if k < len(rd):
                e(rd[k]); k += 1
            e(m)
        while k < len(rd):
            e(rd[k]); k += 1

    g.wait_vm("WQ0")
    for x in p1_reads(0):
        e(x)
    for ks in range(14):
        st = ks & 1
        rd = []
        if ks + 1 < 14:
            g.wait_vm(f"WQ{ks + 1}")
            rd = p1_reads(ks + 1)
        e("s_waitcnt lgkmcnt(0)")
        mf = []
        for t in range(4):
            for mt in range(3):
                a = ACC + (t * 3 + mt) * 4
                cc = "0" if ks == 0 else vr(a, 4)
                mf.append(f"v_mfma_f32_16x16x32_bf16 {vr(a, 4)}, {vr(AF[st] + t * 4, 4)}, {vr(BF[st] + mt * 4, 4)}, {cc}")
        interleave(mf, rd)
        if ks + R1 < 14:
            wq_dma(ks + R1)
        elif ks == 11:
            wo_dma(0)
        elif ks == 13:
            wo_dma(1)
            wo_dma(2)
    g.stamp(3)
    QF = 168
    e("s_nop 7")
    e("s_nop 1")
    for s in range(2):
        for mt in range(3):
            for hf in range(2):
                a = ACC + ((2 * s + hf) * 3 + mt) * 4
                d = QF + (s * 3 + mt) * 4 + hf * 2
                e(f"v_cvt_pk_bf16_f32 v{d}, v{a}, v{a + 1}")
                e(f"v_cvt_pk_bf16_f32 v{d + 1}, v{a + 2}, v{a + 3}")
    if dbg == 1:
        pass
    SA = 192
    g.wait_vm("K")
    e("s_nop 1")
    for s in range(2):
        for jt in range(3):
            for mt in range(3):
                a = SA + (jt * 3 + mt) * 4
                cc = "0" if s == 0 else vr(a, 4)
                e(f"v_mfma_f32_16x16x32_bf16 {vr(a, 4)}, {vr(32 + (jt * 2 + s) * 4, 4)}, {vr(QF + (s * 3 + mt) * 4, 4)}, {cc}")
    e("s_barrier")
    g.stamp(4)
    e(f"s_mul_i32 s{sT}, s{sW}, 9216")
    e(f"v_add_u32 v28, s{sT}, v25")
    e("s_nop 7")
    for tl in range(9):
        e(f"ds_write_b128 v28, {vr(SA + tl * 4, 4)} offset:{SP + tl * 1024}")
    e("s_waitcnt lgkmcnt(0)")
    e("s_barrier")
    e(f"s_cmp_ge_u32 s{sW}, 3")
    e("s_cbranch_scc1 K1_SMX_DONE")
    e(f"s_lshl_b32 s{sT}, s{sW}, 10")
    e(f"v_add_u32 v28, s{sT}, v25")
    T = 64
    for jt in range(3):
        for w2 in range(4):
            e(f"ds_read_b128 {vr(T + (jt * 4 + w2) * 4, 4)}, v28 offset:{SP + w2 * 9216 + jt * 3 * 1024}")
    e("s_waitcnt lgkmcnt(0)")
    for jt in range(3):
        b0 = T + jt * 16
        for r in range(4):
            e(f"v_add_f32 v{b0 + r}, v{b0 + r}, v{b0 + 4 + r}")
            e(f"v_add_f32 v{b0 + 8 + r}, v{b0 + 8 + r}, v{b0 + 12 + r}")
        for r in range(4):
            e(f"v_add_f32 v{b0 + r}, v{b0 + r}, v{b0 + 8 + r}")
    sv = [T + jt * 16 + r for jt in range(3) for r in range(4)]
    e(f"v_max3_f32 v112, v{sv[0]}, v{sv[1]}, v{sv[2]}")
    for k in range(3, 11, 2):
        e(f"v_max3_f32 v112, v112, v{sv[k]}, v{sv[k + 1]}")
    e(f"v_max_f32 v112, v112, v{sv[11]}")

    def xlane(op, reg, tmp):
        for sw in ("v_permlane16_swap_b32", "v_permlane32_swap_b32"):
            e(f"v_mov_b32 v{tmp}, v{reg}")
            e("s_nop 1")
            e(f"{sw} v{reg}, v{tmp}")
            e("s_nop 1")
            e(f"{op} v{reg}, v{reg}, v{tmp}")

    xlane("v_max_f32", 112, 113)
    e(f"v_mul_f32 v112, s{sC}, v112")
    for k in range(12):
        e(f"v_fma_f32 v{sv[k]}, v{sv[k]}, s{sC}, -v112")
    for k in range(12):
        e(f"v_exp_f32 v{sv[k]}, v{sv[k]}")
    e("s_nop 0")
    e(f"v_add_f32 v114, v{sv[0]}, v{sv[1]}")
    for k in range(2, 12):
        e(f"v_add_f32 v114, v114, v{sv[k]}")
    xlane("v_add_f32", 114, 113)
    e("v_rcp_f32 v114, v114")
    e("s_nop 0")
    for k in range(12):
        e(f"v_mul_f32 v{sv[k]}, v{sv[k]}, v114")
    for jt in range(3):
        b0 = T + jt * 16
        e(f"v_cvt_pk_bf16_f32 v{116 + jt * 2}, v{b0}, v{b0 + 1}")
        e(f"v_cvt_pk_bf16_f32 v{117 + jt * 2}, v{b0 + 2}, v{b0 + 3}")
    e(f"s_mul_i32 s{sT}, s{sW}, 1536")
    e(f"v_add_u32 v28, s{sT}, v26")
    for jt in range(3):
        e(f"ds_write_b64 v28, {vr(116 + jt * 2, 2)} offset:{PB + jt * 512}")
    e("s_waitcnt lgkmcnt(0)")
    g.lab("K1_SMX_DONE")
    e("s_barrier")
    g.stamp(5)
    PF = 168
    for mt in range(3):
        for jt in range(3):
            e(f"ds_read_b64 {vr(PF + mt * 8 + jt * 2, 2)}, v26 offset:{PB + (mt * 3 + jt) * 512}")
        e(f"v_mov_b32 v{PF + mt * 8 + 6}, 0")
        e(f"v_mov_b32 v{PF + mt * 8 + 7}, 0")
    VF = 112
    g.wait_vm("V")
    for dt in range(4):
        for jt in range(3):
            e(f"ds_read_b64_tr_b16 {vr(VF + dt * 8 + jt * 2, 2)}, v{20 + dt} offset:{jt * 2048}")
        e(f"v_mov_b32 v{VF + dt * 8 + 6}, 0")
        e(f"v_mov_b32 v{VF + dt * 8 + 7}, 0")
    e("s_waitcnt lgkmcnt(0)")
    for s in range(2):
        for dt in range(4):
            for mt in range(3):
                a = ACC + (dt * 3 + mt) * 4
                cc = "0" if s == 0 else vr(a, 4)
                e(f"v_mfma_f32_16x16x32_bf16 {vr(a, 4)}, {vr(VF + dt * 8 + s * 4, 4)}, {vr(PF + mt * 8 + s * 4, 4)}, {cc}")
    OF = 192
    e("s_nop 7")
    e("s_nop 1")
    for s in range(2):
        for mt in range(3):
            for hf in range(2):
                a = ACC + ((2 * s + hf) * 3 + mt) * 4
                d = OF + (s * 3 + mt) * 4 + hf * 2
                e(f"v_cvt_pk_bf16_f32 v{d}, v{a}, v{a + 1}")
                e(f"v_cvt_pk_bf16_f32 v{d + 1}, v{a + 2}, v{a + 3}")
    e(f"s_mul_i32 s{sT}, s{sW}, 6144")
    e(f"v_add_u32 v28, s{sT}, v25")
    for s in range(2):
        for mt in range(3):
            e(f"ds_write_b128 v28, {vr(OF + (s * 3 + mt) * 4, 4)} offset:{OB + (s * 3 + mt) * 1024}")
    e("s_waitcnt lgkmcnt(0)")
    e("s_barrier")
    A4 = 64
    AF4 = [148, 176]
    BF4 = [204, 216]

    def p4_reads(S):
        st = S & 1
        slot = S % R2
        L = []
        for nt in range(7):
            for hf in range(2):
                L.append(f"ds_read_b64_tr_b16 {vr(AF4[st] + nt * 4 + hf * 2, 2)}, v24 offset:{slot * 7168 + hf * 3584 + nt * 32}")
        for mt in range(3):
            L.append(f"ds_read_b128 {vr(BF4[st] + mt * 4, 4)}, v25 offset:{OB + (S * 3 + mt) * 1024}")
        return L

    g.stamp(6)
    g.wait_vm("WO0")
    for x in p4_reads(0):
        e(x)
    for S in range(8):
        st = S & 1
        rd = []
        if S + 1 < 8:
            g.wait_vm(f"WO{S + 1}")
            rd = p4_reads(S + 1)
        e("s_waitcnt lgkmcnt(0)")
        mf = []
        for nt in range(7):
            for mt in range(3):
                a = A4 + (nt * 3 + mt) * 4
                cc = "0" if S == 0 else vr(a, 4)
                mf.append(f"v_mfma_f32_16x16x32_bf16 {vr(a, 4)}, {vr(AF4[st] + nt * 4, 4)}, {vr(BF4[st] + mt * 4, 4)}, {cc}")
        interleave(mf, rd)
        if S + R2 < 8:
            wo_dma(S + R2)
    g.stamp(9)
    e("s_barrier")
    e("v_mul_u32_u24 v28, 912, v2")
    e("v_lshl_add_u32 v28, v3, 3, v28")
    e(f"s_mul_i32 s{sT}, s{sW}, 224")
    e(f"v_add_u32 v28, s{sT}, v28")
    for mt in range(3):
        for nt in range(7):
            a = A4 + (nt * 3 + mt) * 4
            d = 148 + (mt * 7 + nt) * 2
            e(f"v_cvt_pk_bf16_f32 v{d}, v{a}, v{a + 1}")
            e(f"v_cvt_pk_bf16_f32 v{d + 1}, v{a + 2}, v{a + 3}")
            e(f"ds_write_b64 v28, {vr(d, 2)} offset:{mt * 16 * 912 + nt * 32}")
    e("s_waitcnt lgkmcnt(0)")
    e("s_barrier")
    e("s_mov_b64 s[66:67], exec")
    e("s_mov_b32 exec_lo, -1")
    e("s_mov_b32 exec_hi, 0x00ffffff")
    e(f"s_mul_i32 s{sT}, s{sW}, {12 * 912}")
    e(f"v_add_u32 v28, s{sT}, v25")
    for r in range(12):
        e(f"ds_read_b128 {vr(64 + r * 4, 4)}, v28 offset:{r * 912}")
    e(f"s_mul_i32 s{sT}, s{sB}, {48 * 14336}")
    e(f"s_mul_i32 s{sT2}, s{sW}, {12 * 14336}")
    e(f"s_add_u32 s{sT}, s{sT}, s{sT2}")
    e(f"s_mul_i32 s{sT2}, s{sH}, 896")
    e(f"s_add_u32 s{sT}, s{sT}, s{sT2}")
    for r in range(12):
        e(f"s_waitcnt lgkmcnt({11 - r})")
        g.vmem(f"buffer_store_dwordx4 {vr(64 + r * 4, 4)}, v25, s[40:43], s{sT} offen sc1", "ST")
        if r < 11:
            e(f"s_add_u32 s{sT}, s{sT}, 14336")
    e("s_mov_b64 exec, s[66:67]")
    e("s_waitcnt vmcnt(0)")
    e("s_barrier")
    g.stamp(10)
    e(f"s_cmp_lg_u32 s{sW}, 0")
    e("s_cbranch_scc1 K1_POLLED")
    e("s_mov_b32 s68, s16")
    e("s_mov_b32 s69, s17")
    e(f"s_lshl_b32 s{sT}, s{sB}, 2")
    e("s_add_u32 s68, s68, s" + str(sT))
    e("s_addc_u32 s69, s69, 0")
    e("v_mov_b32 v28, 0")
    e("v_mov_b32 v29, 1")
    e("s_mov_b64 exec, 1")
    e("global_atomic_add v28, v29, s[68:69]")
    e("s_mov_b32 s48, 0")
    g.lab("K1_POLL")
    e("global_load_dword v30, v28, s[68:69] sc1")
    e("s_waitcnt vmcnt(0)")
    e("v_readfirstlane_b32 s49, v30")
    e("s_add_u32 s48, s48, 1")
    e("s_cmp_ge_u32 s49, 16")
    e("s_cbranch_scc1 K1_POLL_OK")
    e("s_cmp_lt_u32 s48, 0x400000")
    e("s_cbranch_scc1 K1_POLL")
    g.lab("K1_POLL_OK")
    e("s_mov_b64 exec, s[66:67]")
    g.lab("K1_POLLED")
    e("s_barrier")
    g.stamp(11)
    e(f"s_cmp_ge_u32 s{sW}, 3")
    e("s_cbranch_scc1 K1_RED_DONE")
    e("s_mov_b32 exec_lo, -1")
    e("s_mov_b32 exec_hi, 0x00ffffff")
    e(f"s_mul_i32 s{sT}, s{sB}, 48")
    e(f"s_mul_i32 s{sT2}, s{sH}, 3")
    e(f"s_add_u32 s{sT}, s{sT}, s{sT2}")
    e(f"s_add_u32 s{sT}, s{sT}, s{sW}")
    e(f"s_mul_i32 s{sT2}, s{sT}, 14336")
    for hh in range(16):
        g.vmem(f"buffer_load_dwordx4 {vr(64 + hh * 4, 4)}, v25, s[40:43], s{sT2} offen sc1", f"R{hh}")
        if hh < 15:
            e(f"s_add_u32 s{sT2}, s{sT2}, 896")
    e("s_mov_b32 s49, 0xffff0000")
    for hh in range(16):
        g.wait_vm(f"R{hh}")
        for r in range(4):
            src = 64 + hh * 4 + r
            if hh == 0:
                e(f"v_lshlrev_b32 v{140 + 2 * r}, 16, v{src}")
                e(f"v_and_b32 v{141 + 2 * r}, s49, v{src}")
            else:
                e(f"v_lshlrev_b32 v{150 + 2 * r}, 16, v{src}")
                e(f"v_and_b32 v{151 + 2 * r}, s49, v{src}")
        if hh:
            for r in range(4):
                e(f"v_pk_add_f32 {vr(140 + 2 * r, 2)}, {vr(140 + 2 * r, 2)}, {vr(150 + 2 * r, 2)}")
    for r in range(4):
        e(f"v_cvt_pk_bf16_f32 v{160 + r}, v{140 + 2 * r}, v{141 + 2 * r}")
    e(f"s_mul_i32 s{sT}, s{sT}, 896")
    g.vmem(f"buffer_store_dwordx4 v[160:163], v25, s[96:99], s{sT} offen", "OUT")
    e("s_mov_b64 exec, s[66:67]")
    g.lab("K1_RED_DONE")
    g.stamp(7)
    e("s_waitcnt vmcnt(0)")
    g.stamp(8)
    if STAMPS:
        e("s_waitcnt lgkmcnt(0)")
        e("s_cmp_lg_u32 s2, 9")
        e("s_cbranch_scc1 K1_END")
        e("s_cmp_lg_u32 s46, 0")
        e("s_cbranch_scc1 K1_END")
        e("s_mov_b32 s18, s16")
        e("s_mov_b32 s19, s17")
        e("s_mov_b32 s16, s16")
        e("s_mov_b32 s40, s16")
        e("s_mov_b32 s41, s17")
        e("s_mov_b32 s42, 256")
        e("v_mov_b32 v1, 0")
        for k in STAMP_ORDER:
            e(f"v_mov_b32 v2, s{72 + 2 * k}")
            e(f"buffer_store_dword v2, v1, s[40:43], 0 offen offset:{4 * STAMP_ORDER.index(k)}")
        e("s_waitcnt vmcnt(0)")
    g.lab("K1_END")
    e("s_endpgm")


def gen_k2(g):
    e = g.e
    g.lab("k2_kernel")
    e("s_cmp_ge_u32 s2, 336")
    e("s_cbranch_scc1 K2_END")
    e("s_load_dwordx2 s[4:5], s[0:1], 40")
    e("s_load_dwordx2 s[6:7], s[0:1], 56")
    e("s_lshl_b32 s3, s2, 8")
    e("v_add_u32 v1, s3, v0")
    e("v_lshlrev_b32 v2, 4, v1")
    e("v_lshlrev_b32 v3, 3, v1")
    e("s_waitcnt lgkmcnt(0)")
    e("s_mov_b32 s8, s4")
    e("s_mov_b32 s9, s5")
    e("s_mov_b32 s10, 688128")
    e("s_mov_b32 s11, 0x00020000")
    e("s_mov_b32 s12, s6")
    e("s_mov_b32 s13, s7")
    e(f"s_mov_b32 s14, {16 * PART_H}")
    e("s_mov_b32 s15, 0x00020000")
    for h in range(16):
        e(f"s_mov_b32 s16, {h * PART_H}")
        e(f"buffer_load_dwordx4 {vr(8 + h * 4, 4)}, v2, s[12:15], s16 offen")
    for step in (1, 2, 4, 8):
        n = 16 // (2 * step)
        e(f"s_waitcnt vmcnt(0)") if step == 1 else None
        for k in range(0, 16, 2 * step):
            for r in range(4):
                e(f"v_add_f32 v{8 + k * 4 + r}, v{8 + k * 4 + r}, v{8 + (k + step) * 4 + r}")
    e("v_cvt_pk_bf16_f32 v4, v8, v9")
    e("v_cvt_pk_bf16_f32 v5, v10, v11")
    e("buffer_store_dwordx2 v[4:5], v3, s[8:11], 0 offen")
    e("s_waitcnt vmcnt(0)")
    g.lab("K2_END")
    e("s_endpgm")


def kd(name, vgpr, sgpr):
    return f""".amdhsa_kernel {name}
  .amdhsa_next_free_vgpr {vgpr}
  .amdhsa_next_free_sgpr {sgpr}
  .amdhsa_accum_offset {(vgpr + 3) // 4 * 4}
  .amdhsa_group_segment_fixed_size 0
  .amdhsa_kernarg_size 64
  .amdhsa_user_sgpr_count 2
  .amdhsa_user_sgpr_kernarg_segment_ptr 1
  .amdhsa_system_sgpr_workgroup_id_x 1
.end_amdhsa_kernel
"""


def main():
    out = HEADER
    out += f"; @launch grid=(256,1,1) block=(256,1,1) lds={LDS_TOTAL}\n"
    out += '.amdgcn_target "amdgcn-amd-amdhsa--gfx950"\n.text\n'
    g = Gen()
    gen_k1(g)
    kn = NAME + "_kernel"
    out += f".globl {kn}\n.p2align 8\n.type {kn},@function\n{kn}:\n" + g.text()
    out += '.section .rodata,"a"\n.p2align 6\n'
    out += kd(kn, 256, 100)
    open(f"cdna_kernels/{NAME}.s" if not STAMPS else "stamps.s", "w").write(out)


main()
```

```python
import sys

NAME = "standalone__gqa_block_cached__near_ridge"
TWO = "two" in sys.argv
STAMPI = "s_memrealtime" if len(sys.argv) > 2 else "s_memtime"
STAMP_ORDER = [0,1,2,3,4,5,6,9,10,11,7,8]
STAMPS = len(sys.argv) > 1 and sys.argv[1] == "stamps"

HEADER = """; Kernarg layout for this problem (64 bytes, ptrs only, base s[0:1]):
"""


class Gen:
    def __init__(self):
        self.lines = []
        self.vm = []

    def e(self, s):
        self.lines.append("    " + s)

    def lab(self, s):
        self.lines.append(s + ":")

    def c(self, s):
        self.lines.append("    ; " + s)

    def vmem(self, s, tag):
        self.e(s)
        self.vm.append(tag)

    def wait_vm(self, tag):
        idx = max(i for i, t in enumerate(self.vm) if t == tag)
        n = len(self.vm) - 1 - idx
        n = min(n, 63)
        self.e(f"s_waitcnt vmcnt({n})")

    def stamp(self, idx):
        if not STAMPS: return
        self.e(f"{STAMPI} s[{72 + 2 * idx}:{73 + 2 * idx}]")

    def text(self):
        return "\n".join(self.lines) + "\n"


def vr(a, n):
    return f"v[{a}:{a + n - 1}]"


XB = 0
SP = 0
PB = 36864
OB = 0
WB0 = 43008
WBS = 27648
RING = 6144
LDS_TOTAL = WB0 + 4 * WBS

R1 = 5
R2 = 3

PART_H = 768 * 448 * 4


def gen_k1(g, dbg=0):
    e = g.e
    sW, sB, sH = 46, 44, 45
    sXb, sWq, sKb, sVb, sWo, sOutB = 50, 51, 52, 53, 54, 55
    sRing, sVl = 56, 57
    sT, sT2, sT3 = 58, 59, 60
    sC = 61
    sKj1, sKj2 = 62, 63
    sO1, sO2 = 64, 65

    e("s_cmp_ge_u32 s2, 256")
    e("s_cbranch_scc1 K1_END")
    e("s_load_dwordx16 s[4:19], s[0:1], 0")
    g.stamp(0)
    e("v_and_b32 v1, 63, v0")
    e("v_lshrrev_b32 v28, 6, v0")
    e("v_and_b32 v2, 15, v1")
    e("v_lshrrev_b32 v3, 4, v1")
    e("v_readfirstlane_b32 s46, v28")
    e("s_and_b32 s47, s2, 7")
    e("s_lshr_b32 s48, s2, 3")
    e("s_and_b32 s49, s48, 1")
    e("s_lshl_b32 s45, s47, 1")
    e("s_add_u32 s45, s45, s49")
    e("s_lshr_b32 s44, s48, 1")
    e("v_mul_u32_u24 v4, 896, v2")
    e("v_lshl_add_u32 v4, v3, 4, v4")
    e("v_lshrrev_b32 v28, 3, v1")
    e("v_and_b32 v29, 7, v1")
    e("v_lshrrev_b32 v30, 1, v28")
    e("v_and_b32 v31, 1, v30")
    e("v_lshlrev_b32 v31, 1, v31")
    e("v_xor_b32 v31, v29, v31")
    e("v_lshlrev_b32 v5, 13, v28")
    e("v_lshl_add_u32 v5, v31, 4, v5")
    e("v_xor_b32 v31, 4, v31")
    e("v_lshlrev_b32 v6, 13, v28")
    e("v_lshl_add_u32 v6, v31, 4, v6")
    e("v_and_b32 v31, 3, v30")
    e("v_lshlrev_b32 v31, 1, v31")
    e("v_xor_b32 v31, v29, v31")
    e("v_lshlrev_b32 v7, 9, v28")
    e("v_lshl_add_u32 v7, v31, 4, v7")
    e("s_movk_i32 s58, 4682")
    for q in range(7):
        e(f"v_add_u32 v28, {64 * q}, v1")
        e("v_mul_u32_u24 v29, s58, v28")
        e("v_lshrrev_b32 v29, 16, v29")
        e("v_mul_u32_u24 v30, 14, v29")
        e("v_sub_u32 v30, v28, v30")
        e(f"v_mul_u32_u24 v{8 + q}, 896, v29")
        e(f"v_lshl_add_u32 v{8 + q}, v30, 4, v{8 + q}")
    e("v_lshlrev_b32 v15, 9, v2")
    e("v_lshl_add_u32 v15, v3, 3, v15")
    e("v_lshlrev_b32 v25, 4, v1")
    e("v_lshlrev_b32 v26, 3, v1")
    e("v_lshrrev_b32 v28, 2, v1")
    e("v_and_b32 v28, 3, v28")
    e("v_and_b32 v29, 3, v1")
    e("s_waitcnt lgkmcnt(0)")
    def srd(d, p, size):
        e(f"s_mov_b32 s{d}, s{p}")
        e(f"s_mov_b32 s{d + 1}, s{p + 1}")
        e(f"s_mov_b32 s{d + 2}, {size}")
        e(f"s_mov_b32 s{d + 3}, 0x00020000")
    srd(20, 4, 688128)
    srd(24, 6, 3145728)
    srd(28, 8, 3145728)
    srd(32, 10, 3670016)
    srd(36, 12, 3670016)
    srd(40, 18, 768 * 16 * 896)
    srd(96, 14, 688128)
    e(f"s_mul_i32 s{sXb}, s{sB}, 43008")
    e(f"s_lshl_b32 s{sT}, s{sW}, 7")
    e(f"s_lshl_b32 s{sWq}, s{sH}, 9")
    e(f"s_add_u32 s{sWq}, s{sWq}, s{sT}")
    e(f"s_lshr_b32 s{sT2}, s{sH}, 1")
    e(f"s_lshl_b32 s{sT3}, s{sB}, 3")
    e(f"s_add_u32 s{sT2}, s{sT2}, s{sT3}")
    e(f"s_mul_i32 s{sKb}, s{sT2}, 24576")
    e(f"s_add_u32 s{sKb}, s{sKb}, s{sT}")
    e(f"s_mov_b32 s{sVb}, s{sKb}")
    e(f"s_add_u32 s{sKj1}, s{sKb}, 8192")
    e(f"s_add_u32 s{sKj2}, s{sKb}, 16384")
    e(f"s_mul_i32 s{sWo}, s{sH}, {256 * 896}")
    e(f"s_mul_i32 s{sT}, s{sW}, 224")
    e(f"s_add_u32 s{sWo}, s{sWo}, s{sT}")
    e(f"s_mul_i32 s{sOutB}, s{sH}, {PART_H}")
    e(f"s_mul_i32 s{sT}, s{sB}, {48 * 1792}")
    e(f"s_add_u32 s{sOutB}, s{sOutB}, s{sT}")
    e(f"s_mul_i32 s{sT}, s{sW}, 448")
    e(f"s_add_u32 s{sOutB}, s{sOutB}, s{sT}")
    e(f"s_add_u32 s{sO1}, s{sOutB}, {16 * 1792}")
    e(f"s_add_u32 s{sO2}, s{sOutB}, {32 * 1792}")
    e(f"s_mul_i32 s{sVl}, s{sW}, {WBS}")
    e(f"s_add_u32 s{sVl}, s{sVl}, {WB0}")
    e(f"s_add_u32 s{sRing}, s{sVl}, {RING}")
    e(f"s_mov_b32 s{sC}, 0x3db8aa3b")
    e("v_lshrrev_b32 v28, 5, v1")
    e("v_and_b32 v29, 31, v1")
    e("v_lshlrev_b32 v28, 13, v28")
    e("v_lshl_add_u32 v28, v29, 4, v28")
    e(f"s_mul_i32 s{sT}, s{sB}, {28 * 8192}")
    e(f"s_mul_i32 s{sT2}, s{sW}, {7 * 8192}")
    e(f"s_add_u32 s{sT}, s{sT}, s{sT2}")
    e(f"s_lshl_b32 s{sT2}, s{sH}, 9")
    e(f"s_add_u32 s{sT}, s{sT}, s{sT2}")
    for q in range(4):
        if q:
            e(f"s_add_u32 s{sT}, s{sT}, 16384")
        g.vmem(f"buffer_load_dwordx4 v[232:235], v28, s[32:35], s{sT} offen", "PF")
    xcount = 0
    for q in range(4):
        if q < 3:
            e(f"s_add_u32 s{sT}, s{sW}, {4 * q}")
        else:
            e(f"s_and_b32 s{sT}, s{sW}, 1")
            e(f"s_add_u32 s{sT}, s{sT}, 12")
        e(f"s_mul_i32 s{sT2}, s{sT}, 3072")
        e(f"s_lshl_b32 s{sT3}, s{sT}, 6")
        e(f"s_add_u32 s{sT3}, s{sT3}, s{sXb}")
        for mt in range(3):
            e(f"s_add_u32 m0, s{sT2}, {XB + mt * 1024}")
            if mt:
                e(f"s_add_u32 s{sT3}, s{sT3}, 14336")
            else:
                e("s_nop 0")
            g.vmem(f"buffer_load_dwordx4 v4, s[20:23], s{sT3} offen lds", "X")

    def wq_dma(ks):
        slot = ks % R1
        for i in range(4):
            e(f"s_add_u32 m0, s{sRing}, {slot * 4096 + i * 1024}")
            e(f"s_add_u32 s{sT}, s{sWq}, {(ks * 32 + 8 * i) * 8192}")
            g.vmem(f"buffer_load_dwordx4 v{5 + (i & 1)}, s[32:35], s{sT} offen lds", f"WQ{ks}")

    def wo_dma(S):
        slot = S % R2
        for q in range(7):
            e(f"s_add_u32 m0, s{sRing}, {slot * 7168 + q * 1024}")
            e(f"s_add_u32 s{sT}, s{sWo}, {S * 32 * 896}")
            g.vmem(f"buffer_load_dwordx4 v{8 + q}, s[36:39], s{sT} offen lds", f"WO{S}")

    for ks in range(R1):
        wq_dma(ks)
    for jt in range(3):
        sk = [sKb, sKj1, sKj2][jt]
        for s in range(2):
            for hf in range(2):
                r = 32 + (jt * 2 + s) * 4 + hf * 2
                g.vmem(f"buffer_load_dwordx2 {vr(r, 2)}, v15, s[24:27], s{sk} offen offset:{s * 64 + hf * 32}", "K")
    for q in range(6):
        e(f"s_add_u32 m0, s{sVl}, {q * 1024}")
        e(f"s_add_u32 s{sT}, s{sVb}, {q * 8 * 512}")
        g.vmem(f"buffer_load_dwordx4 v7, s[28:31], s{sT} offen lds", "V")
    e(f"s_mul_i32 s{sT}, s{sH}, {256 * 896}")
    e(f"s_mul_i32 s{sT2}, s{sB}, 14336")
    e(f"s_add_u32 s{sT}, s{sT}, s{sT2}")
    e(f"s_mul_i32 s{sT2}, s{sW}, 3584")
    e(f"s_add_u32 s{sT}, s{sT}, s{sT2}")
    for q in range(4):
        g.vmem(f"buffer_load_dwordx4 v[232:235], v25, s[36:39], s{sT} offen offset:{q * 1024}", "PF")
    e("v_lshrrev_b32 v28, 2, v1")
    e("v_and_b32 v28, 3, v28")
    e("v_and_b32 v29, 3, v1")
    e("v_lshrrev_b32 v30, 1, v28")
    e("v_and_b32 v31, 1, v3")
    e("v_lshl_or_b32 v31, v31, 1, v30")
    e("v_lshl_add_u32 v16, v3, 3, v28")
    e("v_lshlrev_b32 v16, 7, v16")
    e("v_lshl_add_u32 v16, v29, 3, v16")
    e(f"v_add_u32 v16, s{sRing}, v16")
    for t in range(3, -1, -1):
        e(f"v_xor_b32 v24, {t}, v31")
        e(f"v_lshl_add_u32 v{16 + t}, v24, 5, v16")
    e("v_lshl_add_u32 v31, v3, 1, v30")
    e("v_and_b32 v31, 3, v31")
    e("v_lshl_add_u32 v20, v3, 2, v28")
    e("v_mul_u32_u24 v24, 224, v20")
    e("v_lshlrev_b32 v20, 7, v20")
    e("v_lshl_add_u32 v20, v29, 3, v20")
    e(f"v_add_u32 v20, s{sVl}, v20")
    for t in range(3, -1, -1):
        e(f"v_xor_b32 v27, {t}, v31")
        e(f"v_lshl_add_u32 v{20 + t}, v27, 5, v20")
    e("v_lshl_add_u32 v24, v29, 3, v24")
    e(f"v_add_u32 v24, s{sRing}, v24")
    e("v_mul_u32_u24 v27, 1792, v2")
    e("v_lshl_add_u32 v27, v3, 4, v27")

    g.stamp(1)
    g.wait_vm("X")
    e("s_barrier")
    g.stamp(2)

    ACC = 64
    AF = [112, 128]
    BF = [144, 156]

    def p1_reads(ks):
        st = ks & 1
        slot = ks % R1
        L = []
        for t in range(4):
            for hf in range(2):
                L.append(f"ds_read_b64_tr_b16 {vr(AF[st] + t * 4 + hf * 2, 2)}, v{16 + t} offset:{slot * 4096 + hf * 512}")
        for mt in range(3):
            L.append(f"ds_read_b128 {vr(BF[st] + mt * 4, 4)}, v25 offset:{XB + (ks * 3 + mt) * 1024}")
        return L

    def interleave(mf, rd, lead=0):
        k = 0
        for idx, m in enumerate(mf):
            if k < len(rd):
                e(rd[k]); k += 1
            e(m)
        while k < len(rd):
            e(rd[k]); k += 1

    g.wait_vm("WQ0")
    for x in p1_reads(0):
        e(x)
    for ks in range(14):
        st = ks & 1
        rd = []
        if ks + 1 < 14:
            g.wait_vm(f"WQ{ks + 1}")
            rd = p1_reads(ks + 1)
        e("s_waitcnt lgkmcnt(0)")
        mf = []
        for t in range(4):
            for mt in range(3):
                a = ACC + (t * 3 + mt) * 4
                cc = "0" if ks == 0 else vr(a, 4)
                mf.append(f"v_mfma_f32_16x16x32_bf16 {vr(a, 4)}, {vr(AF[st] + t * 4, 4)}, {vr(BF[st] + mt * 4, 4)}, {cc}")
        interleave(mf, rd)
        if ks + R1 < 14:
            wq_dma(ks + R1)
        elif ks == 11:
            wo_dma(0)
        elif ks == 13:
            wo_dma(1)
            wo_dma(2)
    g.stamp(3)
    QF = 168
    e("s_nop 7")
    e("s_nop 1")
    for s in range(2):
        for mt in range(3):
            for hf in range(2):
                a = ACC + ((2 * s + hf) * 3 + mt) * 4
                d = QF + (s * 3 + mt) * 4 + hf * 2
                e(f"v_cvt_pk_bf16_f32 v{d}, v{a}, v{a + 1}")
                e(f"v_cvt_pk_bf16_f32 v{d + 1}, v{a + 2}, v{a + 3}")
    if dbg == 1:
        pass
    SA = 192
    g.wait_vm("K")
    e("s_nop 1")
    for s in range(2):
        for jt in range(3):
            for mt in range(3):
                a = SA + (jt * 3 + mt) * 4
                cc = "0" if s == 0 else vr(a, 4)
                e(f"v_mfma_f32_16x16x32_bf16 {vr(a, 4)}, {vr(32 + (jt * 2 + s) * 4, 4)}, {vr(QF + (s * 3 + mt) * 4, 4)}, {cc}")
    e("s_barrier")
    g.stamp(4)
    e(f"s_mul_i32 s{sT}, s{sW}, 9216")
    e(f"v_add_u32 v28, s{sT}, v25")
    e("s_nop 7")
    for tl in range(9):
        e(f"ds_write_b128 v28, {vr(SA + tl * 4, 4)} offset:{SP + tl * 1024}")
    e("s_waitcnt lgkmcnt(0)")
    e("s_barrier")
    e(f"s_cmp_ge_u32 s{sW}, 3")
    e("s_cbranch_scc1 K1_SMX_DONE")
    e(f"s_lshl_b32 s{sT}, s{sW}, 10")
    e(f"v_add_u32 v28, s{sT}, v25")
    T = 64
    for jt in range(3):
        for w2 in range(4):
            e(f"ds_read_b128 {vr(T + (jt * 4 + w2) * 4, 4)}, v28 offset:{SP + w2 * 9216 + jt * 3 * 1024}")
    e("s_waitcnt lgkmcnt(0)")
    for jt in range(3):
        b0 = T + jt * 16
        for r in range(4):
            e(f"v_add_f32 v{b0 + r}, v{b0 + r}, v{b0 + 4 + r}")
            e(f"v_add_f32 v{b0 + 8 + r}, v{b0 + 8 + r}, v{b0 + 12 + r}")
        for r in range(4):
            e(f"v_add_f32 v{b0 + r}, v{b0 + r}, v{b0 + 8 + r}")
    sv = [T + jt * 16 + r for jt in range(3) for r in range(4)]
    e(f"v_max3_f32 v112, v{sv[0]}, v{sv[1]}, v{sv[2]}")
    for k in range(3, 11, 2):
        e(f"v_max3_f32 v112, v112, v{sv[k]}, v{sv[k + 1]}")
    e(f"v_max_f32 v112, v112, v{sv[11]}")

    def xlane(op, reg, tmp):
        for sw in ("v_permlane16_swap_b32", "v_permlane32_swap_b32"):
            e(f"v_mov_b32 v{tmp}, v{reg}")
            e("s_nop 1")
            e(f"{sw} v{reg}, v{tmp}")
            e("s_nop 1")
            e(f"{op} v{reg}, v{reg}, v{tmp}")

    xlane("v_max_f32", 112, 113)
    e(f"v_mul_f32 v112, s{sC}, v112")
    for k in range(12):
        e(f"v_fma_f32 v{sv[k]}, v{sv[k]}, s{sC}, -v112")
    for k in range(12):
        e(f"v_exp_f32 v{sv[k]}, v{sv[k]}")
    e("s_nop 0")
    e(f"v_add_f32 v114, v{sv[0]}, v{sv[1]}")
    for k in range(2, 12):
        e(f"v_add_f32 v114, v114, v{sv[k]}")
    xlane("v_add_f32", 114, 113)
    e("v_rcp_f32 v114, v114")
    e("s_nop 0")
    for k in range(12):
        e(f"v_mul_f32 v{sv[k]}, v{sv[k]}, v114")
    for jt in range(3):
        b0 = T + jt * 16
        e(f"v_cvt_pk_bf16_f32 v{116 + jt * 2}, v{b0}, v{b0 + 1}")
        e(f"v_cvt_pk_bf16_f32 v{117 + jt * 2}, v{b0 + 2}, v{b0 + 3}")
    e(f"s_mul_i32 s{sT}, s{sW}, 1536")
    e(f"v_add_u32 v28, s{sT}, v26")
    for jt in range(3):
        e(f"ds_write_b64 v28, {vr(116 + jt * 2, 2)} offset:{PB + jt * 512}")
    e("s_waitcnt lgkmcnt(0)")
    g.lab("K1_SMX_DONE")
    e("s_barrier")
    g.stamp(5)
    PF = 168
    for mt in range(3):
        for jt in range(3):
            e(f"ds_read_b64 {vr(PF + mt * 8 + jt * 2, 2)}, v26 offset:{PB + (mt * 3 + jt) * 512}")
        e(f"v_mov_b32 v{PF + mt * 8 + 6}, 0")
        e(f"v_mov_b32 v{PF + mt * 8 + 7}, 0")
    VF = 112
    g.wait_vm("V")
    for dt in range(4):
        for jt in range(3):
            e(f"ds_read_b64_tr_b16 {vr(VF + dt * 8 + jt * 2, 2)}, v{20 + dt} offset:{jt * 2048}")
        e(f"v_mov_b32 v{VF + dt * 8 + 6}, 0")
        e(f"v_mov_b32 v{VF + dt * 8 + 7}, 0")
    e("s_waitcnt lgkmcnt(0)")
    for s in range(2):
        for dt in range(4):
            for mt in range(3):
                a = ACC + (dt * 3 + mt) * 4
                cc = "0" if s == 0 else vr(a, 4)
                e(f"v_mfma_f32_16x16x32_bf16 {vr(a, 4)}, {vr(VF + dt * 8 + s * 4, 4)}, {vr(PF + mt * 8 + s * 4, 4)}, {cc}")
    OF = 192
    e("s_nop 7")
    e("s_nop 1")
    for s in range(2):
        for mt in range(3):
            for hf in range(2):
                a = ACC + ((2 * s + hf) * 3 + mt) * 4
                d = OF + (s * 3 + mt) * 4 + hf * 2
                e(f"v_cvt_pk_bf16_f32 v{d}, v{a}, v{a + 1}")
                e(f"v_cvt_pk_bf16_f32 v{d + 1}, v{a + 2}, v{a + 3}")
    e(f"s_mul_i32 s{sT}, s{sW}, 6144")
    e(f"v_add_u32 v28, s{sT}, v25")
    for s in range(2):
        for mt in range(3):
            e(f"ds_write_b128 v28, {vr(OF + (s * 3 + mt) * 4, 4)} offset:{OB + (s * 3 + mt) * 1024}")
    e("s_waitcnt lgkmcnt(0)")
    e("s_barrier")
    A4 = 64
    AF4 = [148, 176]
    BF4 = [204, 216]

    def p4_reads(S):
        st = S & 1
        slot = S % R2
        L = []
        for nt in range(7):
            for hf in range(2):
                L.append(f"ds_read_b64_tr_b16 {vr(AF4[st] + nt * 4 + hf * 2, 2)}, v24 offset:{slot * 7168 + hf * 3584 + nt * 32}")
        for mt in range(3):
            L.append(f"ds_read_b128 {vr(BF4[st] + mt * 4, 4)}, v25 offset:{OB + (S * 3 + mt) * 1024}")
        return L

    g.stamp(6)
    g.wait_vm("WO0")
    for x in p4_reads(0):
        e(x)
    for S in range(8):
        st = S & 1
        rd = []
        if S + 1 < 8:
            g.wait_vm(f"WO{S + 1}")
            rd = p4_reads(S + 1)
        e("s_waitcnt lgkmcnt(0)")
        mf = []
        for nt in range(7):
            for mt in range(3):
                a = A4 + (nt * 3 + mt) * 4
                cc = "0" if S == 0 else vr(a, 4)
                mf.append(f"v_mfma_f32_16x16x32_bf16 {vr(a, 4)}, {vr(AF4[st] + nt * 4, 4)}, {vr(BF4[st] + mt * 4, 4)}, {cc}")
        interleave(mf, rd)
        if S + R2 < 8:
            wo_dma(S + R2)
    g.stamp(9)
    e("s_barrier")
    e("v_mul_u32_u24 v28, 912, v2")
    e("v_lshl_add_u32 v28, v3, 3, v28")
    e(f"s_mul_i32 s{sT}, s{sW}, 224")
    e(f"v_add_u32 v28, s{sT}, v28")
    for mt in range(3):
        for nt in range(7):
            a = A4 + (nt * 3 + mt) * 4
            d = 148 + (mt * 7 + nt) * 2
            e(f"v_cvt_pk_bf16_f32 v{d}, v{a}, v{a + 1}")
            e(f"v_cvt_pk_bf16_f32 v{d + 1}, v{a + 2}, v{a + 3}")
            e(f"ds_write_b64 v28, {vr(d, 2)} offset:{mt * 16 * 912 + nt * 32}")
    e("s_waitcnt lgkmcnt(0)")
    e("s_barrier")
    e("s_mov_b64 s[66:67], exec")
    e("s_mov_b32 exec_lo, -1")
    e("s_mov_b32 exec_hi, 0x00ffffff")
    e(f"s_mul_i32 s{sT}, s{sW}, {12 * 912}")
    e(f"v_add_u32 v28, s{sT}, v25")
    for r in range(12):
        e(f"ds_read_b128 {vr(64 + r * 4, 4)}, v28 offset:{r * 912}")
    e(f"s_mul_i32 s{sT}, s{sB}, {48 * 14336}")
    e(f"s_mul_i32 s{sT2}, s{sW}, {12 * 14336}")
    e(f"s_add_u32 s{sT}, s{sT}, s{sT2}")
    e(f"s_mul_i32 s{sT2}, s{sH}, 896")
    e(f"s_add_u32 s{sT}, s{sT}, s{sT2}")
    for r in range(12):
        e(f"s_waitcnt lgkmcnt({11 - r})")
        g.vmem(f"buffer_store_dwordx4 {vr(64 + r * 4, 4)}, v25, s[40:43], s{sT} offen" + ("" if TWO else " sc1"), "ST")
        if r < 11:
            e(f"s_add_u32 s{sT}, s{sT}, 14336")
    e("s_mov_b64 exec, s[66:67]")
    if TWO:
        e("s_branch K1_END")
    e("s_waitcnt vmcnt(0)")
    e("s_barrier")
    g.stamp(10)
    e(f"s_cmp_lg_u32 s{sW}, 0")
    e("s_cbranch_scc1 K1_POLLED")
    e("s_mov_b32 s68, s16")
    e("s_mov_b32 s69, s17")
    e(f"s_lshl_b32 s{sT}, s{sB}, 4")
    e("s_add_u32 s68, s68, s" + str(sT))
    e("s_addc_u32 s69, s69, 0")
    e(f"v_mov_b32 v28, s{sH}")
    e("v_mov_b32 v29, 1")
    e("v_mov_b32 v31, 0")
    e("s_mov_b64 exec, 1")
    e("global_store_byte v28, v29, s[68:69] sc1")
    e("s_mov_b32 s48, 0")
    e("s_mov_b32 s3, 0x01010101")
    g.lab("K1_POLL")
    e("global_load_dwordx4 v[232:235], v31, s[68:69] sc1")
    e("s_waitcnt vmcnt(0)")
    e("v_and_b32 v232, v232, v233")
    e("v_and_b32 v234, v234, v235")
    e("v_and_b32 v232, v232, v234")
    e("s_nop 0")
    e("v_readfirstlane_b32 s49, v232")
    e("s_add_u32 s48, s48, 1")
    e("s_cmp_eq_u32 s49, s3")
    e("s_cbranch_scc1 K1_POLL_OK")
    e("s_sleep 1")
    e("s_cmp_lt_u32 s48, 0x400000")
    e("s_cbranch_scc1 K1_POLL")
    g.lab("K1_POLL_OK")
    e("s_mov_b64 exec, s[66:67]")
    g.lab("K1_POLLED")
    e("s_barrier")
    g.stamp(11)
    e(f"s_cmp_ge_u32 s{sW}, 3")
    e("s_cbranch_scc1 K1_RED_DONE")
    e("s_mov_b32 exec_lo, -1")
    e("s_mov_b32 exec_hi, 0x00ffffff")
    e(f"s_mul_i32 s{sT}, s{sB}, 48")
    e(f"s_mul_i32 s{sT2}, s{sH}, 3")
    e(f"s_add_u32 s{sT}, s{sT}, s{sT2}")
    e(f"s_add_u32 s{sT}, s{sT}, s{sW}")
    e(f"s_mul_i32 s{sT2}, s{sT}, 14336")
    for hh in range(16):
        g.vmem(f"buffer_load_dwordx4 {vr(64 + hh * 4, 4)}, v25, s[40:43], s{sT2} offen sc1", f"R{hh}")
        if hh < 15:
            e(f"s_add_u32 s{sT2}, s{sT2}, 896")
    e("s_mov_b32 s49, 0xffff0000")
    for hh in range(16):
        g.wait_vm(f"R{hh}")
        for r in range(4):
            src = 64 + hh * 4 + r
            if hh == 0:
                e(f"v_lshlrev_b32 v{140 + 2 * r}, 16, v{src}")
                e(f"v_and_b32 v{141 + 2 * r}, s49, v{src}")
            else:
                e(f"v_lshlrev_b32 v{150 + 2 * r}, 16, v{src}")
                e(f"v_and_b32 v{151 + 2 * r}, s49, v{src}")
        if hh:
            for r in range(4):
                e(f"v_pk_add_f32 {vr(140 + 2 * r, 2)}, {vr(140 + 2 * r, 2)}, {vr(150 + 2 * r, 2)}")
    for r in range(4):
        e(f"v_cvt_pk_bf16_f32 v{160 + r}, v{140 + 2 * r}, v{141 + 2 * r}")
    e(f"s_mul_i32 s{sT}, s{sT}, 896")
    g.vmem(f"buffer_store_dwordx4 v[160:163], v25, s[96:99], s{sT} offen", "OUT")
    e("s_mov_b64 exec, s[66:67]")
    g.lab("K1_RED_DONE")
    g.stamp(7)
    e("s_waitcnt vmcnt(0)")
    g.stamp(8)
    if STAMPS:
        e("s_waitcnt lgkmcnt(0)")
        e("s_cmp_lg_u32 s46, 0")
        e("s_cbranch_scc1 K1_END")
        e("s_mov_b32 s40, s18")
        e("s_mov_b32 s41, s19")
        e("s_mov_b32 s42, 0x10000000")
        e("s_lshl_b32 s3, s2, 6")
        e("s_add_u32 s3, s3, 0x4000000")
        e("v_mov_b32 v1, 0")
        for k in STAMP_ORDER:
            e(f"v_mov_b32 v2, s{72 + 2 * k}")
            e(f"buffer_store_dword v2, v1, s[40:43], s3 offen offset:{4 * STAMP_ORDER.index(k)}")
        e("s_waitcnt vmcnt(0)")
    g.lab("K1_END")
    e("s_endpgm")


def gen_k2(g):
    e = g.e
    g.lab("k2_kernel")
    e("s_cmp_ge_u32 s2, 168")
    e("s_cbranch_scc1 K2_END")
    e("s_load_dwordx2 s[4:5], s[0:1], 40")
    e("s_load_dwordx2 s[6:7], s[0:1], 56")
    e("s_lshl_b32 s3, s2, 8")
    e("v_add_u32 v1, s3, v0")
    e("s_mov_b32 s16, 74899")
    e("v_mul_hi_u32 v2, v1, s17") if False else None
    e("v_lshrrev_b32 v4, 3, v1")
    e("s_movk_i32 s16, 9363")
    e("v_mul_u32_u24 v2, s16, v4")
    e("v_lshrrev_b32 v2, 16, v2")
    e("v_mul_u32_u24 v3, 56, v2")
    e("v_sub_u32 v3, v1, v3")
    e("v_mul_u32_u24 v5, 896, v2")
    e("v_lshl_add_u32 v5, v3, 4, v5")
    e("s_movk_i32 s16, 14336")
    e("v_mul_u32_u24 v6, s16, v2")
    e("v_lshl_add_u32 v6, v3, 4, v6")
    e("s_waitcnt lgkmcnt(0)")
    e("s_mov_b32 s8, s4")
    e("s_mov_b32 s9, s5")
    e("s_mov_b32 s10, 688128")
    e("s_mov_b32 s11, 0x00020000")
    e("s_mov_b32 s12, s6")
    e("s_mov_b32 s13, s7")
    e(f"s_mov_b32 s14, {768 * 16 * 896}")
    e("s_mov_b32 s15, 0x00020000")
    for hh in range(16):
        e(f"s_movk_i32 s16, {hh * 896}")
        g.vmem(f"buffer_load_dwordx4 {vr(64 + hh * 4, 4)}, v6, s[12:15], s16 offen", f"R{hh}")
    e("s_mov_b32 s49, 0xffff0000")
    for hh in range(16):
        g.wait_vm(f"R{hh}")
        for r in range(4):
            src = 64 + hh * 4 + r
            if hh == 0:
                e(f"v_lshlrev_b32 v{140 + 2 * r}, 16, v{src}")
                e(f"v_and_b32 v{141 + 2 * r}, s49, v{src}")
            else:
                e(f"v_lshlrev_b32 v{150 + 2 * r}, 16, v{src}")
                e(f"v_and_b32 v{151 + 2 * r}, s49, v{src}")
        if hh:
            for r in range(4):
                e(f"v_pk_add_f32 {vr(140 + 2 * r, 2)}, {vr(140 + 2 * r, 2)}, {vr(150 + 2 * r, 2)}")
    for r in range(4):
        e(f"v_cvt_pk_bf16_f32 v{160 + r}, v{140 + 2 * r}, v{141 + 2 * r}")
    e("buffer_store_dwordx4 v[160:163], v5, s[8:11], 0 offen")
    e("s_waitcnt vmcnt(0)")
    g.lab("K2_END")
    e("s_endpgm")


def kd(name, vgpr, sgpr):
    return f""".amdhsa_kernel {name}
  .amdhsa_next_free_vgpr {vgpr}
  .amdhsa_next_free_sgpr {sgpr}
  .amdhsa_accum_offset {(vgpr + 3) // 4 * 4}
  .amdhsa_group_segment_fixed_size 0
  .amdhsa_kernarg_size 64
  .amdhsa_user_sgpr_count 2
  .amdhsa_user_sgpr_kernarg_segment_ptr 1
  .amdhsa_system_sgpr_workgroup_id_x 1
.end_amdhsa_kernel
"""


def main():
    out = HEADER
    if TWO:
        out += f"; @launch kernel=k1_kernel grid=(256,1,1) block=(256,1,1) lds={LDS_TOTAL}\n"
        out += "; @launch kernel=k2_kernel grid=(168,1,1) block=(256,1,1) lds=0\n"
    else:
        out += f"; @launch grid=(256,1,1) block=(256,1,1) lds={LDS_TOTAL}\n"
    out += '.amdgcn_target "amdgcn-amd-amdhsa--gfx950"\n.text\n'
    g = Gen()
    gen_k1(g)
    kn = NAME + "_kernel" if not TWO else "k1_kernel"
    out += f".globl {kn}\n.p2align 8\n.type {kn},@function\n{kn}:\n" + g.text()
    if TWO:
        g = Gen()
        gen_k2(g)
        out += ".globl k2_kernel\n.p2align 8\n.type k2_kernel,@function\n" + g.text()
    out += '.section .rodata,"a"\n.p2align 6\n'
    out += kd(kn, 256, 100)
    if TWO:
        out += ".p2align 6\n" + kd("k2_kernel", 168, 64)
    fn = f"cdna_kernels/{NAME}.s"
    if STAMPS: fn = "stamps.s"
    if TWO: fn = "two.s"
    open(fn, "w").write(out)


main()
```
